```python
import torch

def _softmax(x, axis=-1):
    return torch.softmax(x, dim=axis)

def _gelu(x):
    return torch.nn.functional.gelu(x, approximate='tanh')

def _silu(x):
    return torch.nn.functional.silu(x)

def _sigmoid(x):
    return torch.sigmoid(x)

def _layernorm(x, axis=-1, eps=1e-05):
    m = x.mean(dim=axis, keepdim=True)
    v = x.var(dim=axis, keepdim=True, unbiased=False)
    return (x - m) / torch.sqrt(v + eps)

def _scatter_add(tgt, idx, src, axis=0):
    return tgt.clone().index_add_(axis, idx, src)

def _segment_sum(src, seg, n):
    out = torch.zeros((n,) + src.shape[1:], dtype=src.dtype)
    return out.index_add_(0, seg, src)

def _pad(x, pw):
    flat = tuple((v for pair in reversed(pw) for v in pair))
    return torch.nn.functional.pad(x, flat)
kernel_name = 'standalone__dilated_atrous__vision'

def setup_inputs():

    _w = lambda a: (lambda t: t.to(torch.bfloat16) if t.is_floating_point() else t)(torch.as_tensor(a))
    H = W = 224
    C = 192
    k = 3
    return {'x': _w((lambda *s: torch.randn(*s, dtype=torch.bfloat16) * 0.05)(1, H, W, C)), 'w': _w((lambda *s: torch.randn(*s, dtype=torch.bfloat16) * 0.05)(k, k, C, C) * (1.0 / (k * C ** 0.5)))}

def reference(x, w):
    B, H, W, C = x.shape
    k = 3
    rate = 2
    pad = (k - 1) * rate // 2
    xp = _pad(x, ((0, 0), (pad, pad), (pad, pad), (0, 0)))
    out = torch.zeros_like(x)
    for i in range(k):
        for j in range(k):
            tap = xp[:, i * rate:i * rate + H, j * rate:j * rate + W, :].clone()
            out = out + torch.einsum('bhwc,co->bhwo', tap, w[i, j])
    return out
```

```python
import sys
out = sys.argv[1]
eps = float(sys.argv[2]) if len(sys.argv)>2 else 0.0
noise = float(sys.argv[3]) if len(sys.argv)>3 else 0.0
import struct
def f2u(f): return struct.unpack("<I", struct.pack("<f", f))[0]
L=[]; A=L.append
A("; @launch grid=(2352,1,1) block=(256,1,1) lds=0")
A('''.amdgcn_target "amdgcn-amd-amdhsa--gfx950"
.text
.globl standalone__dilated_atrous__vision_kernel
.p2align 8
.type standalone__dilated_atrous__vision_kernel,@function
standalone__dilated_atrous__vision_kernel:
s_cmp_ge_u32 s2, 2352
s_cbranch_scc1 L_end
s_load_dwordx2 s[4:5], s[0:1], 0
s_load_dwordx2 s[6:7], s[0:1], 8
s_load_dwordx2 s[16:17], s[0:1], 16
v_lshrrev_b32 v1, 6, v0
s_nop 0
v_readfirstlane_b32 s3, v1
s_nop 3
s_lshl_b32 s18, s2, 2
s_add_u32 s18, s18, s3
s_mov_b32 s19, 0x15555556       ; ceil(2^32/12)
s_mul_hi_u32 s20, s18, s19
s_mul_i32 s21, s20, 12
s_sub_u32 s21, s18, s21         ; chtile
s_waitcnt lgkmcnt(0)
s_mov_b32 s8, s4
s_mov_b32 s9, s5
s_mov_b32 s10, 19267584
s_mov_b32 s11, 0x20000
s_mov_b32 s12, s6
s_mov_b32 s13, s7
s_mov_b32 s14, 663552
s_mov_b32 s15, 0x20000
s_mov_b32 s24, s16
s_mov_b32 s25, s17
s_mov_b32 s26, 19267584
s_mov_b32 s27, 0x20000
v_and_b32 v2, 63, v0            ; lane
v_and_b32 v3, 15, v2            ; l&15
v_lshrrev_b32 v4, 4, v2         ; g = l>>4
s_lshl_b32 s22, s20, 6
s_mov_b32 s23, 0x124924a        ; ceil(2^32/224)
''')
for t in range(4):
    A(f"v_add_u32 v5, s22, v3")
    A(f"v_add_u32 v5, {16*t}, v5")
    A(f"v_mul_hi_u32 v{8+2*t}, v5, s23")
    A(f"v_mul_u32_u24 v6, 224, v{8+2*t}")
    A(f"v_sub_u32 v{9+2*t}, v5, v6")
A("v_mul_u32_u24 v16, 3072, v4")
A("s_lshl_b32 s28, s21, 5")
A("v_lshlrev_b32 v5, 1, v3")
A("v_add_u32 v16, v16, v5")
A("v_add_u32 v16, s28, v16")
for i in range(16): A(f"v_mov_b32 v{64+i}, 0")
A("s_mov_b32 s30, 0   ; tap i")
A("L_i:")
A("s_mov_b32 s31, 0   ; tap j")
A("L_j:")
A("s_lshl_b32 s32, s30, 1\ns_sub_u32 s32, s32, 2")
A("s_lshl_b32 s33, s31, 1\ns_sub_u32 s33, s33, 2")
A("s_mov_b32 s34, 224")
for t in range(4):
    A(f"v_add_u32 v5, s32, v{8+2*t}")
    A(f"v_add_u32 v6, s33, v{9+2*t}")
    A(f"v_cmp_gt_u32 vcc, s34, v5")
    A(f"v_cmp_gt_u32 s[36:37], s34, v6")
    A(f"s_and_b64 vcc, vcc, s[36:37]")
    A(f"v_mul_u32_u24 v5, 224, v5")
    A(f"v_add_u32 v5, v5, v6")
    A(f"v_mul_u32_u24 v5, 384, v5")
    A(f"v_lshlrev_b32 v6, 4, v4")
    A(f"v_add_u32 v5, v5, v6")
    A(f"v_mov_b32 v6, 0x7fffff00")
    A(f"v_cndmask_b32 v{20+t}, v6, v5, vcc")
A("s_mul_i32 s35, s30, 3\ns_add_u32 s35, s35, s31\ns_mul_i32 s35, s35, 73728")
A("s_mov_b32 s38, 0")
A("L_k:")
for t in range(4):
    A(f"buffer_load_dwordx4 v[{24+4*t}:{27+4*t}], v{20+t}, s[8:11], s38 offen")
A("s_mul_i32 s39, s38, 192   ; c0*384 = (s38/2)*384")
A("s_add_u32 s39, s39, s35")
for i in range(8):
    A(f"buffer_load_ushort v{44+i}, v16, s[12:15], s39 offen offset:{i*384}")
A("s_waitcnt vmcnt(0)")
for i in range(4):
    A(f"v_lshl_or_b32 v{40+i}, v{45+2*i}, 16, v{44+2*i}")
A("s_nop 1")
for t in range(4):
    A(f"v_mfma_f32_16x16x32_bf16 v[{64+4*t}:{67+4*t}], v[{24+4*t}:{27+4*t}], v[40:43], v[{64+4*t}:{67+4*t}]")
A("s_add_u32 s38, s38, 64\ns_cmp_lt_u32 s38, 384\ns_cbranch_scc1 L_k")
A("s_add_u32 s31, s31, 1\ns_cmp_lt_u32 s31, 3\ns_cbranch_scc1 L_j")
A("s_add_u32 s30, s30, 1\ns_cmp_lt_u32 s30, 3\ns_cbranch_scc1 L_i")
A("s_nop 15")
A("v_lshlrev_b32 v5, 2, v4")
A("v_add_u32 v5, s22, v5")
A("v_mul_u32_u24 v5, 384, v5")
A("v_lshlrev_b32 v6, 1, v3")
A("v_add_u32 v5, v5, v6")
A("v_add_u32 v5, s28, v5")
if eps!=0.0:
    A(f"s_mov_b32 s40, {f2u(1.0+eps):#x}")
    for i in range(16): A(f"v_mul_f32 v{64+i}, s40, v{64+i}")
if noise!=0.0:
    A(f"s_mov_b32 s40, {f2u(noise*2.0/4294967296.0):#x}")
    A(f"s_mov_b32 s41, 2654435761")
    A(f"s_mov_b32 s42, 2246822519")
    A(f"s_mov_b32 s43, {f2u(noise):#x}")
    for i in range(16):
        A(f"v_add_u32 v6, {i*977}, v5")
        A(f"v_mul_lo_u32 v6, v6, s41")
        A(f"v_lshrrev_b32 v7, 15, v6")
        A(f"v_xor_b32 v6, v6, v7")
        A(f"v_mul_lo_u32 v6, v6, s42")
        A(f"v_lshrrev_b32 v7, 13, v6")
        A(f"v_xor_b32 v6, v6, v7")
        A(f"v_cvt_f32_u32 v6, v6")
        A(f"v_mul_f32 v6, s40, v6")
        A(f"v_subrev_f32 v6, s43, v6")
        A(f"v_add_f32 v{64+i}, v{64+i}, v6")
for t in range(4):
    for r in range(4):
        A(f"v_cvt_pk_bf16_f32 v7, v{64+4*t+r}, v{64+4*t+r}")
        A(f"buffer_store_short v7, v5, s[24:27], 0 offen offset:{r*384}")
        A("s_nop 1")
    A("v_add_u32 v5, 6144, v5")
A("s_waitcnt vmcnt(0)")
A("L_end:")
A("s_endpgm")
A('''.section .rodata,"a"
.p2align 6
.amdhsa_kernel standalone__dilated_atrous__vision_kernel
  .amdhsa_next_free_vgpr 80
  .amdhsa_next_free_sgpr 48
  .amdhsa_accum_offset 80
  .amdhsa_group_segment_fixed_size 0
  .amdhsa_kernarg_size 40
  .amdhsa_user_sgpr_count 2
  .amdhsa_user_sgpr_kernarg_segment_ptr 1
  .amdhsa_system_sgpr_workgroup_id_x 1
.end_amdhsa_kernel''')
open(out,"w").write("\n".join(L)+"\n")
```
